```python
import torch

def _softmax(x, axis=-1):
    return torch.softmax(x, dim=axis)
def _gelu(x):
    return torch.nn.functional.gelu(x, approximate="tanh")
def _silu(x):
    return torch.nn.functional.silu(x)
def _sigmoid(x):
    return torch.sigmoid(x)
def _layernorm(x, axis=-1, eps=1e-5):
    m = x.mean(dim=axis, keepdim=True)
    v = x.var(dim=axis, keepdim=True, unbiased=False)
    return (x - m) / torch.sqrt(v + eps)
def _scatter_add(tgt, idx, src, axis=0):
    return tgt.clone().index_add_(axis, idx, src)
def _segment_sum(src, seg, n):
    out = torch.zeros((n,) + src.shape[1:], dtype=src.dtype)
    return out.index_add_(0, seg, src)
def _pad(x, pw):
    flat = tuple(v for pair in reversed(pw) for v in pair)
    return torch.nn.functional.pad(x, flat)

kernel_name = 'concat_heads__mha_block_cached__mha_block_cached__near_ridge'

def setup_inputs():

    _w = (lambda a: (lambda t: t.to(torch.bfloat16) if t.is_floating_point() else t)(torch.as_tensor(a)))
    def _A_setup():
        B, Sq, D = 8, 128, 1024
        H, Sk, Dh = 32, 1024, 128
        return {
            "x": _w((lambda *s: torch.randn(*s, dtype=torch.bfloat16) * 0.8)(B, Sq, D)),
            "k_cache": _w((lambda *s: torch.randn(*s, dtype=torch.bfloat16) * 0.8)(B, H, Sk, Dh)),
            "v_cache": _w((lambda *s: torch.randn(*s, dtype=torch.bfloat16) * 0.05)(B, H, Sk, Dh)),
            "wq": _w((lambda *s: torch.randn(*s, dtype=torch.bfloat16) * 0.8)(D, H * Dh) * (D ** -0.5)),
            "wo": _w((lambda *s: torch.randn(*s, dtype=torch.bfloat16) * 0.05)(H * Dh, D) * ((H * Dh) ** -0.5)),
        }
    _A_in = _A_setup()

    def _B_setup():
        B, Sq, D = 8, 128, 1024
        H, Sk, Dh = 32, 1024, 128
        return {
            "x": _w((lambda *s: torch.randn(*s, dtype=torch.bfloat16) * 0.8)(B, Sq, D)),
            "k_cache": _w((lambda *s: torch.randn(*s, dtype=torch.bfloat16) * 0.8)(B, H, Sk, Dh)),
            "v_cache": _w((lambda *s: torch.randn(*s, dtype=torch.bfloat16) * 0.05)(B, H, Sk, Dh)),
            "wq": _w((lambda *s: torch.randn(*s, dtype=torch.bfloat16) * 0.8)(D, H * Dh) * (D ** -0.5)),
            "wo": _w((lambda *s: torch.randn(*s, dtype=torch.bfloat16) * 0.05)(H * Dh, D) * ((H * Dh) ** -0.5)),
        }
    _B_in = _B_setup()

    return {
        "A_x": _A_in["x"],
        "A_k_cache": _A_in["k_cache"],
        "A_v_cache": _A_in["v_cache"],
        "A_wq": _A_in["wq"],
        "A_wo": _A_in["wo"],
        "B_x": _B_in["x"],
        "B_k_cache": _B_in["k_cache"],
        "B_v_cache": _B_in["v_cache"],
        "B_wq": _B_in["wq"],
        "B_wo": _B_in["wo"],
    }

def reference(A_x, A_k_cache, A_v_cache, A_wq, A_wo, B_x, B_k_cache, B_v_cache, B_wq, B_wo):
    def _A_ref(x, k_cache, v_cache, wq, wo):
        B, Sq, D = x.shape
        H, Dh = 32, 128
        q = (lambda x, *d: x.permute(*d))((x @ wq).reshape(B, Sq, H, Dh), 0, 2, 1, 3)
        scores = torch.einsum("bhqd,bhkd->bhqk", q, k_cache) * (Dh ** -0.5)
        p = _softmax(scores, axis=-1)
        o = torch.einsum("bhqk,bhkd->bhqd", p, v_cache)
        return (lambda x, *d: x.permute(*d))(o, 0, 2, 1, 3).reshape(B, Sq, H * Dh) @ wo

    def _B_ref(x, k_cache, v_cache, wq, wo):
        B, Sq, D = x.shape
        H, Dh = 32, 128
        q = (lambda x, *d: x.permute(*d))((x @ wq).reshape(B, Sq, H, Dh), 0, 2, 1, 3)
        scores = torch.einsum("bhqd,bhkd->bhqk", q, k_cache) * (Dh ** -0.5)
        p = _softmax(scores, axis=-1)
        o = torch.einsum("bhqk,bhkd->bhqd", p, v_cache)
        return (lambda x, *d: x.permute(*d))(o, 0, 2, 1, 3).reshape(B, Sq, H * Dh) @ wo

    a = _A_ref(A_x, A_k_cache, A_v_cache, A_wq, A_wo)
    b = _B_ref(B_x, B_k_cache, B_v_cache, B_wq, B_wo)
    return torch.concatenate([a, b], axis=-1)
```

```python
import sys, struct, math
NAME = "concat_heads__mha_block_cached__mha_block_cached__near_ridge"

def f2u(x): return struct.unpack("<I", struct.pack("<f", x))[0]

class Cfg:
    diag = False
    n1 = None
    n2 = None
    split_p = True
    kv_pol = "nt"
    q_pol = ""
    wo_pol = ""
    out_pol = ""
    n1_tab = (4, 12)
    n2_tab = (7, 13)
    T = 8.0

SX, SWQ, SK, SV, SWO, SOW, SOR, SOUT, SDBG = 4, 8, 12, 16, 20, 24, 28, 32, 36
sRet, sRet2 = 40, 42
sW4k, sCo, sPrev, sCnt = 44, 45, 46, 47
sKV, sVp, sKt, sQx, sQw, sQh = 48, 49, 50, 51, 52, 53
sPt, sPw, sPw2, sPleft, sPph = 54, 55, 56, 57, 58
sOa, sOb, sOt, sOleft = 59, 60, 61, 62
sT, sClamp, sN1, sN2, sWave = 63, 64, 65, 66, 67
sOst, sCtrP, sCtrC, sRot, sTmp, sTmp2, sScale, sOOB = 68, 69, 70, 71, 72, 73, 74, 75
sKt0, sStamp, sStI = 76, 78, 77
SST = 80
vO = 0
vSA, vSB = 64, 80
vPA, vPB = 96, 104
vNM = 112
vKF = 128
vVF = 160
vA = 192
vKb, vVb, vXb, vWb, vOb = 204, 205, 206, 207, 208
vDK, vDV = 209, 210
vDX, vDW, vDO = 211, 215, 219
vOL = 223
vOut = 225
vL0, vL1, vMx = 226, 227, 228
vT = 230
vTid = 238
NV = 240
aQ, aQn, aAcc, aOF, aP, aG = 0, 32, 64, 64, 128, 160
NA = 200

def v(i, n=1): return f"v{i}" if n == 1 else f"v[{i}:{i+n-1}]"
def a(i, n=1): return f"a{i}" if n == 1 else f"a[{i}:{i+n-1}]"
def s(i, n=1): return f"s{i}" if n == 1 else f"s[{i}:{i+n-1}]"
def mfma(d, A, B, C): return f"v_mfma_f32_32x32x16_bf16 {d}, {A}, {B}, {C}"

class G:
    def __init__(self, cfg):
        self.c = cfg; self.L = []; self.tail = []; self.uid = 0
    def e(self, *xs):
        for x in xs:
            if isinstance(x, (list, tuple)): self.e(*x)
            else: self.L.extend(x.split("\n"))
    def lab(self, p):
        self.uid += 1; return f"{p}_{self.uid}"
    def weave(self, mf, gaps):
        assert len(mf) == len(gaps)
        for m, g in zip(mf, gaps):
            self.e(m); self.e(g)

    def ld(self, typ):
        c = self.c
        mA = [f"s_add_u32 m0, {s(sPrev)}, {s(sW4k)}"]
        mB = [f"s_add_u32 m0, m0, 0x4000"]
        def dma(vo, srd, so, i, pol): return f"buffer_load_dwordx4 {v(vo)}, {s(srd,4)}, {s(so)} offen offset:{1024*i} {pol} lds".replace("  ", " ")
        if typ == "A":
            A = [dma(vDK, SK, sKV, i, c.kv_pol) for i in range(4)]
            B = [dma(vDV, SV, sKV if i < 2 else sVp, i, c.kv_pol) for i in range(4)]
            post = [f"s_mov_b32 {s(sVp)}, {s(sKV)}", f"s_add_u32 {s(sKV)}, {s(sKV)}, 0x4000"]
        elif typ == "Q":
            A = [dma(vDX + i, SX, sQx, i, c.q_pol) for i in range(4)]
            B = [dma(vDW + i, SWQ, sQw, i, c.q_pol) for i in range(4)]
            post = [f"s_add_u32 {s(sKt)}, {s(sKt)}, 1", f"s_and_b32 {s(sKt)}, {s(sKt)}, 15", f"s_lshl_b32 {s(sQx)}, {s(sKt)}, 7",
                    f"s_lshl_b32 {s(sQw)}, {s(sKt)}, 19", f"s_add_u32 {s(sQw)}, {s(sQw)}, {s(sQh)}"]
        elif typ == "P":
            A = [dma(vDO + i, SWO, sPw, i, c.wo_pol) for i in range(4)]
            B = [dma(vDO + i, SWO, sPw2, i, c.wo_pol) for i in range(4)]
            post = self.p_ld_next()
        return mA, A, mB, B, post
    def p_ld_calc(self):
        c = self.c
        if c.split_p:
            return [f"s_lshl_b32 {s(sPw)}, {s(sPt)}, 20", f"s_add_u32 {s(sPw)}, {s(sPw)}, {s(sPph)}",
                    f"s_cmp_eq_u32 {s(sPleft)}, 0", f"s_cselect_b32 {s(sPw)}, {s(sOOB)}, {s(sPw)}", f"s_add_u32 {s(sPw2)}, {s(sPw)}, 0x80000"]
        return [f"s_lshl_b32 {s(sPw)}, {s(sPt)}, 19",
                f"s_cmp_eq_u32 {s(sPleft)}, 0", f"s_cselect_b32 {s(sPw)}, {s(sOOB)}, {s(sPw)}", f"s_add_u32 {s(sPw2)}, {s(sPw)}, 0x40000"]
    def p_ld_next(self):
        m = 7 if self.c.split_p else 15
        return [f"s_add_u32 {s(sPt)}, {s(sPt)}, 1", f"s_and_b32 {s(sPt)}, {s(sPt)}, {m}",
                f"s_sub_u32 {s(sPleft)}, {s(sPleft)}, 1", f"s_max_i32 {s(sPleft)}, {s(sPleft)}, 0"] + self.p_ld_calc()
    def slot_adv(self):
        return [f"s_mov_b32 {s(sPrev)}, {s(sCo)}", f"s_add_u32 {s(sCo)}, {s(sCo)}, 0x8000",
                f"s_cmp_eq_u32 {s(sCo)}, 0x28000", f"s_cselect_b32 {s(sCo)}, 0, {s(sCo)}"]
    def ld_block(self, typ):
        mA, A, mB, B, post = self.ld(typ)
        self.e(mA, "s_nop 0", A, mB, "s_nop 0", B, post)
    def top(self, vm=24):
        self.e(f"s_waitcnt vmcnt({vm}) lgkmcnt(0)", "s_barrier")
    def loop_end(self, head):
        self.e(f"s_sub_u32 {s(sCnt)}, {s(sCnt)}, 1", f"s_cmp_lg_u32 {s(sCnt)}, 0", f"s_cbranch_scc1 {head}", f"s_setpc_b64 {s(sRet,2)}")

    def rdK(self, ks, blk): return f"ds_read_b128 {v(vKF+4*ks,4)}, {v(vA+ks)} offset:{2048*blk}"
    def rdV(self, i, u, blk):
        m, dt = i // 4, i % 4
        return f"ds_read_b64_tr_b16 {v(vVF+4*i+2*u,2)}, {v(vA+8+dt)} offset:{16384 + 4096*(2*m+u) + 2048*blk}"
    def addrK(self): return [f"v_add_u32 {v(vA)}, {s(sCo)}, {v(vKb)}"] + [f"v_xor_b32 {v(vA+k)}, {k<<5}, {v(vA)}" for k in range(1, 8)]
    def addrV(self): return [f"v_add_u32 {v(vA+8)}, {s(sCo)}, {v(vVb)}"] + [f"v_xor_b32 {v(vA+8+k)}, {k<<6}, {v(vA+8)}" for k in range(1, 4)]
    def pv(self, P): return [mfma(v(vO+16*(i%4),16), v(vVF+4*i,4), v(P+4*(i//4),4), v(vO+16*(i%4),16)) for i in range(8)]
    def qk(self, S): return [mfma(v(S,16), v(vKF+4*k,4), a(aQ+4*k,4), v(vNM,16) if k == 0 else v(S,16)) for k in range(8)]
    def adds(self, S): return [f"v_add_f32 {v(vL0+(i&1))}, {v(vL0+(i&1))}, {v(S+i)}" for i in range(16)]
    def maxs(self, S):
        r = [f"v_max3_f32 {v(vMx)}, {v(S)}, {v(S+1)}, {v(S+2)}"]
        for i in range(3, 15, 2): r.append(f"v_max3_f32 {v(vMx)}, {v(vMx)}, {v(S+i)}, {v(S+i+1)}")
        r.append(f"v_max_f32 {v(vMx)}, {v(vMx)}, {v(S+15)}")
        return r
    def check(self, S):
        t, b = self.lab("Ltr"), self.lab("Lbk")
        self.tail += [f"{t}:", f"s_call_b64 {s(sRet2,2)}, {'LrareA' if S == vSA else 'LrareB'}", f"s_branch {b}"]
        return [f"s_cbranch_vccnz {t}", f"{b}:"]
    def cmp(self): return f"v_cmp_lt_f32 vcc, {s(sT)}, {v(vMx)}"
    def softmax_gaps(self, S, P, blk_v):
        ex = lambda i: f"v_exp_f32 {v(S+i)}, {v(S+i)}"
        cv = lambda j: f"v_cvt_pk_bf16_f32 {v(P+j)}, {v(S+2*j)}, {v(S+2*j+1)}"
        rd = [self.rdV(i, u, blk_v) for i in range(8) for u in range(2)]
        nrd = [3, 3, 3, 3, 2, 2, 0, 0]
        gaps = []; ri = 0
        for g in range(8):
            x = [ex(2*g)]
            r = rd[ri:ri+nrd[g]]; ri += nrd[g]
            if g > 0: x.append(cv(g-1))
            x += r[:1] + [ex(2*g+1)] + r[1:]
            gaps.append(x)
        return gaps, cv(7)

    def a_body(self, lt):
        head = f"LA{lt}"
        mA, A, mB, B, post = self.ld(lt)
        self.e(f"{head}:")
        self.top()
        for half in range(2):
            X, Y = (vSA, vSB) if half == 0 else (vSB, vSA)
            PX, PY = (vPA, vPB) if half == 0 else (vPB, vPA)
            ad = self.adds(X); mx = self.maxs(Y)
            rk = [self.rdK(k, half) for k in range(8)]
            if half == 0:
                ak, av = self.addrK(), self.addrV()
                gaps = [[ak[0], ak[1], rk[0], rk[1], ak[2], ak[3]],
                        [rk[2], rk[3], ak[4], ak[5], ad[0], ad[1]],
                        [rk[4], rk[5], ak[6], ak[7], mA, ad[2], ad[3]],
                        [rk[6], rk[7], A[0], ad[4], ad[5], ad[6], mx[0]],
                        [A[1], ad[7], ad[8], mx[1], mx[2], av[0]],
                        [A[2], ad[9], ad[10], ad[11], mx[3], mx[4], av[1]],
                        [A[3], ad[12], ad[13], mx[5], mx[6], av[2]],
                        [mx[7], ad[14], self.cmp(), ad[15], av[3]]]
            else:
                sa = self.slot_adv()
                gaps = [[lastcv, rk[0], rk[1], mB, ad[0]],
                        [rk[2], rk[3], B[0], ad[1], ad[2]],
                        [rk[4], rk[5], B[1], ad[3], ad[4]],
                        [rk[6], rk[7], B[2], ad[5], ad[6], mx[0]],
                        [B[3], ad[7], ad[8], mx[1], mx[2], post[:2]],
                        [ad[9], ad[10], ad[11], mx[3], mx[4], post[2:5]],
                        [ad[12], ad[13], mx[5], mx[6], post[5:]],
                        [mx[7], ad[14], self.cmp(), ad[15]]]
                self.e("s_waitcnt lgkmcnt(0)")
            self.weave(self.pv(PX), gaps)
            self.e(self.check(Y))
            self.e("s_waitcnt lgkmcnt(0)")
            gaps, lastcv = self.softmax_gaps(Y, PY, 1 - half)
            if half == 1:
                gaps[6] += sa[:2]; gaps[7] += sa[2:] + [lastcv]
            self.weave(self.qk(X), gaps)
        self.loop_end(head)

    def rare(self, S, name):
        e = self.e
        e(f"{name}:", "s_nop 15",
          f"v_mov_b32 {v(vT)}, {v(vMx)}", "s_nop 1",
          f"v_permlane32_swap_b32 {v(vT)}, {v(vMx)}", "s_nop 1",
          f"v_max3_f32 {v(vT)}, {v(vT)}, {v(vMx)}, {s(sClamp)}",
          f"v_max_f32 {v(vT+1)}, 0, {v(vT)}",
          f"v_exp_f32 {v(vT+1)}, -{v(vT+1)}")
        for i in range(16): e(f"v_sub_f32 {v(S+i)}, {v(S+i)}, {v(vT)}")
        for i in range(16): e(f"v_sub_f32 {v(vNM+i)}, {v(vNM+i)}, {v(vT)}")
        for i in range(64): e(f"v_mul_f32 {v(vO+i)}, {v(vO+i)}, {v(vT+1)}")
        e(f"v_mul_f32 {v(vL0)}, {v(vL0)}, {v(vT+1)}", f"v_mul_f32 {v(vL1)}, {v(vL1)}, {v(vT+1)}",
          f"s_mov_b32 {s(sT)}, {hex(f2u(self.c.T))}", f"s_mov_b32 {s(sClamp)}, 0", "s_nop 1",
          f"s_setpc_b64 {s(sRet2,2)}")

    def e_block(self):
        e = self.e
        e("LE:")
        self.top()
        ad = self.adds(vSA); mx = self.maxs(vSB); av = self.addrV()
        gaps = [av, ad[0:4], ad[4:8], ad[8:12] + mx[0:1], ad[12:16] + mx[1:2], mx[2:5], mx[5:8], [self.cmp(), "s_nop 0"]]
        self.weave(self.pv(vPA), gaps)
        e(self.check(vSB))
        gaps, lastcv = self.softmax_gaps(vSB, vPB, 1)
        for g in gaps: e(g)
        e("s_nop 0", lastcv, "s_waitcnt lgkmcnt(0)", "s_nop 0")
        ad = self.adds(vSB)
        fin = [f"v_add_f32 {v(vL0)}, {v(vL0)}, {v(vL1)}", f"v_mov_b32 {v(vL1)}, {v(vL0)}", "s_nop 1",
               f"v_permlane32_swap_b32 {v(vL0)}, {v(vL1)}", "s_nop 1",
               f"v_add_f32 {v(vL0)}, {v(vL0)}, {v(vL1)}", f"v_rcp_f32 {v(vL0)}, {v(vL0)}"]
        self.weave(self.pv(vPB), [ad[0:4], ad[4:8], ad[8:12], ad[12:16], fin[0:3], fin[3:6], fin[6:], []])
        e("s_nop 7")
        for m in range(8):
            if m == 6: e("s_nop 0")
            for j in range(8): e(f"v_mul_f32 {v(vO+8*m+j)}, {v(vO+8*m+j)}, {v(vL0)}")
            for j in range(4): e(f"v_cvt_pk_bf16_f32 {v(vKF+4*m+j)}, {v(vO+8*m+2*j)}, {v(vO+8*m+2*j+1)}")
            e(f"buffer_store_dwordx4 {v(vKF+4*m,4)}, {v(vOL+m//4)}, {s(SOW,4)}, {s(sOst)} offen offset:{1024*(m%4)} sc1")
        e(f"s_add_u32 {s(sOst)}, {s(sOst)}, 0x8000", f"s_setpc_b64 {s(sRet,2)}")

    def head_init(self):
        e = self.e
        e("LHI:")
        for i in range(32): e(f"v_accvgpr_mov_b32 {a(aQ+i)}, {a(aQn+i)}")
        for i in range(64): e(f"v_mov_b32 {v(vO+i)}, 0")
        for i in range(16): e(f"v_mov_b32 {v(vSA+i)}, 0")
        e(f"s_mov_b32 {s(sT)}, 0xff800000", f"s_mov_b32 {s(sClamp)}, 0xff800000")
        for i in range(16): e(f"v_mov_b32 {v(vSB+i)}, {s(sT)}")
        for i in range(8): e(f"v_mov_b32 {v(vPA+i)}, 0")
        for i in range(16): e(f"v_mov_b32 {v(vNM+i)}, 0")
        e(f"v_mov_b32 {v(vL0)}, 0", f"v_mov_b32 {v(vL1)}, 0", f"s_setpc_b64 {s(sRet,2)}")

    def q_mf(self, st): return [mfma(a(aAcc+16*dt,16), a(aG+20*st+4+4*dt,4), a(aG+20*st,4), a(aAcc+16*dt,16)) for dt in range(4)]
    def q_body(self, lt):
        head = f"LQ{lt}"
        mA, A, mB, B, post = self.ld(lt)
        e = self.e
        e(f"{head}:")
        self.top()
        ax = [f"v_add_u32 {v(vA)}, {s(sCo)}, {v(vXb)}"] + [f"v_xor_b32 {v(vA+k)}, {k<<5}, {v(vA)}" for k in range(1, 4)]
        aw = [f"v_add_u32 {v(vA+4)}, {s(sCo)}, {v(vWb)}"] + [f"v_xor_b32 {v(vA+4+k)}, {k<<6}, {v(vA+4)}" for k in range(1, 4)]
        def rd(ks):
            st = ks & 1
            r = [f"ds_read_b128 {a(aG+20*st,4)}, {v(vA+ks)}"]
            for dt in range(4):
                for u in range(2):
                    r.append(f"ds_read_b64_tr_b16 {a(aG+20*st+4+4*dt+2*u,2)}, {v(vA+4+dt)} offset:{16384 + (16*ks+4*u)*256}")
            return r
        D = [[mA, A[0]], [A[1]], [A[2]], [A[3]], [mB, B[0]], [B[1]], [B[2]], [B[3]]]
        sa = self.slot_adv()
        for ks in range(4):
            r = rd(ks)
            mf = self.q_mf((ks + 1) & 1)
            if ks == 0:
                gaps = [[ax[0], aw[0], r[0], r[1], r[2], aw[1]], [r[3], r[4], aw[2], aw[3], r[5], r[6]],
                        [r[7], r[8], D[0][0], ax[1], D[0][1]], [D[1], ax[2], ax[3]]]
            else:
                extra = {1: [], 2: [], 3: post}[ks]
                gaps = [r[0:4], r[4:7], r[7:9] + D[2*ks][:1] + (["s_nop 0"] if len(D[2*ks]) > 1 else []) + D[2*ks][1:], [D[2*ks+1], extra]]
                if ks == 3: gaps[3] += sa
                e("s_waitcnt lgkmcnt(0)")
            self.weave(mf, gaps)
        self.loop_end(head)
    def q_init(self):
        e = self.e
        e("LQI:")
        for i in range(64): e(f"v_accvgpr_write_b32 {a(aAcc+i)}, 0")
        for i in range(20): e(f"v_accvgpr_write_b32 {a(aG+20+i)}, 0")
        e(f"s_setpc_b64 {s(sRet,2)}")
    def q_fin(self):
        e = self.e
        e("LQF:", "s_waitcnt lgkmcnt(0)", self.q_mf(1), "s_nop 8")
        for dt in range(4):
            if dt == 3: e("s_nop 0")
            for i in range(16): e(f"v_accvgpr_read_b32 {v(vKF+i)}, {a(aAcc+16*dt+i)}")
            for i in range(16): e(f"v_mul_f32 {v(vKF+i)}, {s(sScale)}, {v(vKF+i)}")
            for j in range(8): e(f"v_cvt_pk_bf16_f32 {v(vKF+16+j)}, {v(vKF+2*j)}, {v(vKF+2*j+1)}")
            for j in range(8): e(f"v_accvgpr_write_b32 {a(aQn+8*dt+j)}, {v(vKF+16+j)}")
        e(f"s_setpc_b64 {s(sRet,2)}")

    def o_calc(self):
        c = self.c
        if c.split_p:
            r = [f"s_lshl_b32 {s(sOa)}, {s(sOt)}, 17", f"s_lshr_b32 {s(sTmp)}, {s(sPph)}, 3", f"s_add_u32 {s(sOa)}, {s(sOa)}, {s(sTmp)}"]
            d = 0x10000
        else:
            r = [f"s_lshl_b32 {s(sOa)}, {s(sOt)}, 16"]; d = 0x8000
        return r + [f"s_cmp_eq_u32 {s(sOleft)}, 0", f"s_cselect_b32 {s(sOa)}, {s(sOOB)}, {s(sOa)}", f"s_add_u32 {s(sOb)}, {s(sOa)}, {hex(d)}"]
    def o_next(self):
        m = 7 if self.c.split_p else 15
        return [f"s_add_u32 {s(sOt)}, {s(sOt)}, 1", f"s_and_b32 {s(sOt)}, {s(sOt)}, {m}", f"s_sub_u32 {s(sOleft)}, {s(sOleft)}, 1"] + self.o_calc()
    def ol(self, f):
        return f"buffer_load_dwordx4 {a(aOF+4*f,4)}, {v(vOL+(f%8)//4)}, {s(SOR,4)}, {s(sOa if f < 8 else sOb)} offen offset:{1024*(f%4)} sc1"
    def p_pro(self):
        e = self.e
        e("LPI:", self.o_calc())
        for g in range(8):
            e(f"buffer_load_dword {v(vT+4)}, off, {s(SOR,4)}, {s(sOOB)}", self.ol(2*g), self.ol(2*g+1))
        e(self.o_next(), f"s_setpc_b64 {s(sRet,2)}")
    def p_body(self, lt):
        head = f"LP{lt}"
        mA, A, mB, B, post = self.ld(lt)
        e = self.e
        e(f"{head}:")
        self.top()
        e(f"v_add_u32 {v(vA)}, {s(sCo)}, {v(vOb)}", mA, f"v_xor_b32 {v(vA+1)}, 64, {v(vA)}")
        def rd(g):
            st = g & 1; r = []
            for kk in range(2):
                f = 2*g + kk; tile, m = f // 8, f % 8
                for t in range(2):
                    for u in range(2):
                        r.append(f"ds_read_b64_tr_b16 {a(aG+16*st+8*kk+4*t+2*u,2)}, {v(vA+t)} offset:{16384*tile + (16*m+8*u)*128}")
            return r
        D = A + B
        e(rd(0))
        for g in range(8):
            st = g & 1
            mf = [mfma(a(aP+16*t,16), a(aG+16*st+8*kk+4*t,4), a(aOF+4*(2*g+kk),4), a(aP+16*t,16)) for kk in range(2) for t in range(2)]
            r = rd(g+1) if g < 7 else []
            e("s_waitcnt vmcnt(21) lgkmcnt(0)")
            last = [D[g], self.ol(2*g), self.ol(2*g+1)]
            if g == 3: last += mB
            gaps = [r[0:3], r[3:6], r[6:8], last]
            if g == 7: gaps = [[], [], [], last + post + self.o_next() + self.slot_adv()]
            self.weave(mf, gaps)
        self.loop_end(head)

    def call(self, lab, cnt=None):
        e = self.e
        if cnt is None:
            e(f"s_call_b64 {s(sRet,2)}, {lab}")
        elif isinstance(cnt, int):
            if cnt > 0: e(f"s_mov_b32 {s(sCnt)}, {cnt}", f"s_call_b64 {s(sRet,2)}, {lab}")
        else:
            sk = self.lab("Lsk")
            e(cnt, f"s_cmp_eq_u32 {s(sCnt)}, 0", f"s_cbranch_scc1 {sk}", f"s_call_b64 {s(sRet,2)}, {lab}", f"{sk}:")
    def stamp(self):
        if not self.c.diag: return
        sk = self.lab("Lst")
        self.e(f"s_cmp_lg_u32 {s(sWave)}, 0", f"s_cbranch_scc1 {sk}", "s_waitcnt lgkmcnt(0)", f"s_memrealtime {s(sStamp,2)}", "s_waitcnt lgkmcnt(0)",
               f"v_mov_b32 {v(vT+6)}, {s(sStamp)}", f"v_mov_b32 {v(vT+7)}, {s(sStamp+1)}",
               f"buffer_store_dwordx2 {v(vT+6,2)}, off, {s(SST,4)}, {s(sStI)}", f"s_add_u32 {s(sStI)}, {s(sStI)}, 8", f"{sk}:")
    def signal(self, vm):
        sk = self.lab("Lsg")
        self.e(f"s_waitcnt vmcnt({vm})", "s_barrier", f"s_cmp_lg_u32 {s(sWave)}, 0", f"s_cbranch_scc1 {sk}",
               f"v_mov_b32 {v(vT+2)}, 1", "s_mov_b64 exec, 1",
               f"buffer_atomic_add {v(vT+2)}, off, {s(SDBG,4)}, {s(sCtrP)} sc1", "s_mov_b64 exec, -1",
               f"{sk}:", f"s_add_u32 {s(sCtrP)}, {s(sCtrP)}, 8")
    def poll(self, nctr=1):
        sk, lp = self.lab("Lpk"), self.lab("Lpl")
        e = self.e
        e(f"s_cmp_lg_u32 {s(sWave)}, 0", f"s_cbranch_scc1 {sk}")
        for i in range(nctr):
            lp, dn = self.lab("Lpl"), self.lab("Lpd")
            e(f"s_mov_b32 {s(sTmp2)}, 0x40000", f"{lp}:", f"buffer_load_dword {v(vT+3)}, off, {s(SDBG,4)}, {s(sCtrC)} offset:{8*i} sc1", "s_waitcnt vmcnt(0)",
              f"v_readfirstlane_b32 {s(sTmp)}, {v(vT+3)}", f"s_sub_u32 {s(sTmp2)}, {s(sTmp2)}, 1", f"s_cselect_b32 {s(sTmp)}, 16, {s(sTmp)}",
              f"s_cmp_ge_u32 {s(sTmp)}, 16", f"s_cbranch_scc1 {dn}", "s_sleep 2", f"s_branch {lp}", f"{dn}:")
        e(f"{sk}:", "s_barrier", f"s_add_u32 {s(sCtrC)}, {s(sCtrC)}, {8*nctr}")

    def srd(self, r, lo, off, size):
        e = self.e
        if off is None: e(f"s_mov_b32 {s(r)}, {s(lo)}", f"s_mov_b32 {s(r+1)}, {s(lo+1)}")
        else: e(f"s_add_u32 {s(r)}, {s(lo)}, {off}", f"s_addc_u32 {s(r+1)}, {s(lo+1)}, 0")
        if isinstance(size, int): e(f"s_mov_b32 {s(r+2)}, {hex(size)}")
        else: e(size)
        e(f"s_mov_b32 {s(r+3)}, 0x20000")

    def prologue(self):
        e = self.e; c = self.c
        T0 = 84
        pX, pK, pV, pWq, pWo, pOut, pDbg, pWs = 84, 86, 88, 90, 92, 94, 96, 98
        e("s_cmp_ge_u32 s2, 256", "s_cbranch_scc1 Lend")
        e("s_bfe_u32 s3, s2, 0x10002", "s_mul_i32 s3, s3, 40",
          f"s_load_dwordx4 {s(pOut+2,4)}, s[0:1], 88", f"s_load_dwordx2 {s(pOut,2)}, s[0:1], 80",
          "s_add_u32 s0, s0, s3", "s_addc_u32 s1, s1, 0",
          f"s_load_dwordx8 {s(pX,8)}, s[0:1], 0", f"s_load_dwordx2 {s(pWo,2)}, s[0:1], 32")
        e(f"v_mov_b32 {v(vTid)}, v0", f"v_lshrrev_b32 v1, 6, v0", "v_and_b32 v0, 63, v0", f"v_readfirstlane_b32 {s(sWave)}, v1")
        sB, sHH, sH0, sQ, sJ, sBlk, sPB, sNT = sKV, sVp, sQh, sQx, sQw, sPw, sPw2, sOa
        e(f"s_lshr_b32 {s(sJ)}, s2, 3", f"s_and_b32 {s(sQ)}, s2, 3", f"s_bfe_u32 {s(sBlk)}, s2, 0x10002",
          f"s_and_b32 {s(sB)}, {s(sJ)}, 7", f"s_lshr_b32 {s(sHH)}, {s(sJ)}, 3",
          f"s_lshl_b32 {s(sH0)}, {s(sQ)}, 2", f"s_add_u32 {s(sH0)}, {s(sH0)}, {s(sHH)}", f"s_lshl_b32 {s(sH0)}, {s(sH0)}, 1",
          f"s_lshl_b32 {s(sW4k)}, {s(sWave)}, 12")
        e(f"s_lshl_b32 {s(sKt0)}, {s(sHH)}, 1", f"s_add_u32 {s(sKt0)}, {s(sKt0)}, {s(sB)}", f"s_lshl_b32 {s(sKt0)}, {s(sKt0)}, 1", f"s_and_b32 {s(sKt0)}, {s(sKt0)}, 15")
        e(f"s_lshr_b32 {s(sPB)}, {s(sQ)}, 1", f"s_lshl_b32 {s(sPB)}, {s(sPB)}, 2", f"s_and_b32 {s(sTmp)}, {s(sJ)}, 3", f"s_add_u32 {s(sPB)}, {s(sPB)}, {s(sTmp)}",
          f"s_and_b32 {s(sNT)}, {s(sQ)}, 1", f"s_lshl_b32 {s(sNT)}, {s(sNT)}, 3", f"s_lshr_b32 {s(sTmp2)}, {s(sJ)}, 2", f"s_add_u32 {s(sNT)}, {s(sNT)}, {s(sTmp2)}",
          f"s_lshl_b32 {s(sTmp)}, {s(sTmp)}, 1", f"s_add_u32 {s(sRot)}, {s(sTmp)}, {s(sNT)}", f"s_and_b32 {s(sRot)}, {s(sRot)}, 7")
        if not c.split_p: e(f"s_lshl_b32 {s(sRot)}, {s(sRot)}, 1")
        def rng(dst, lo, hi, fixed, mul):
            if fixed is not None: e(f"s_mov_b32 {s(dst)}, {fixed}"); return
            n = hi - lo + 1
            e(f"s_mul_i32 {s(dst)}, {s(sJ)}, {mul}", f"s_and_b32 {s(dst)}, {s(dst)}, 31", f"s_mul_i32 {s(dst)}, {s(dst)}, {n}", f"s_lshr_b32 {s(dst)}, {s(dst)}, 5", f"s_add_u32 {s(dst)}, {s(dst)}, {lo}")
        rng(sN1, *c.n1_tab, c.n1, 5); rng(sN2, *c.n2_tab, c.n2, 5)
        l = "v0"
        t0, t1, t2, t3, t4 = (v(1), v(2), v(3), v(4), v(5))
        W = s(sWave)
        e(f"v_lshrrev_b32 {t0}, 4, {l}", f"v_and_b32 {t1}, 15, {l}")
        e(f"s_lshl_b32 {s(sTmp)}, {W}, 2", f"v_or_b32 {t2}, {s(sTmp)}, {t0}", f"v_xor_b32 {t2}, {t2}, {t1}", f"v_lshlrev_b32 {t2}, 4, {t2}",
          f"v_lshl_add_u32 {t2}, {t0}, 8, {t2}", f"v_add_u32 {v(vDK)}, {s(sW4k)}, {t2}")
        e(f"v_lshlrev_b32 {t2}, 2, {t0}", f"v_xor_b32 {t2}, {t2}, {t1}", f"v_lshlrev_b32 {t2}, 4, {t2}",
          f"v_lshl_add_u32 {t3}, {t0}, 8, {t2}", f"v_add_u32 {v(vDV)}, {s(sW4k)}, {t3}",
          f"v_lshl_add_u32 {t3}, {t0}, 13, {t2}", f"s_lshl_b32 {s(sTmp)}, {W}, 17", f"v_add_u32 {v(vDW)}, {s(sTmp)}, {t3}")
        for i in range(1, 4): e(f"v_add_u32 {v(vDW+i)}, {i*(32768-1024)}, {v(vDW)}")
        e(f"v_lshrrev_b32 {t2}, 3, {l}", f"v_and_b32 {t3}, 7, {l}", f"s_lshl_b32 {s(sTmp)}, {W}, 16",
          f"v_lshlrev_b32 {t2}, 11, {t2}", f"v_add_u32 {t2}, {s(sTmp)}, {t2}",
          f"v_xor_b32 {t4}, {t3}, {t0}", f"v_lshl_add_u32 {v(vDX)}, {t4}, 4, {t2}")
        e(f"v_xor_b32 {v(vDX+1)}, 64, {v(vDX)}", f"v_add_u32 {v(vDX+2)}, {2*15360}, {v(vDX)}",
          f"v_add_u32 {v(vDX+3)}, {3*15360}, {v(vDX+1)}", f"v_add_u32 {v(vDX+1)}, {15360}, {v(vDX+1)}")
        e(f"v_and_b32 {t4}, 1, {t0}", f"v_lshlrev_b32 {t4}, 2, {t4}", f"v_xor_b32 {t4}, {t4}, {t3}", f"v_lshl_add_u32 {v(vDO)}, {t4}, 4, {t2}")
        for i in range(1, 4): e(f"v_add_u32 {v(vDO+i)}, {i*15360}, {v(vDO)}")
        e("s_waitcnt lgkmcnt(0)")
        e(f"s_lshl_b32 {s(sTmp)}, {s(sB)}, 18"); self.srd(SX, pX, s(sTmp), 0x40000)
        self.srd(SWQ, pWq, None, 0x800000)
        e(f"s_lshl_b32 {s(sTmp)}, {s(sB)}, 5", f"s_add_u32 {s(sTmp)}, {s(sTmp)}, {s(sH0)}", f"s_lshl_b32 {s(sTmp2)}, {s(sTmp)}, 18")
        self.srd(SK, pK, s(sTmp2), 0x80000); self.srd(SV, pV, s(sTmp2), 0x80000)
        e(f"s_lshl_b32 {s(sTmp2)}, {s(sBlk)}, 8", f"s_add_u32 {s(sTmp)}, {s(sTmp)}, {s(sTmp2)}", f"s_lshl_b32 {s(sTmp)}, {s(sTmp)}, 15")
        self.srd(SOW, pWs, s(sTmp), 0x10000)
        e(f"s_lshl_b32 {s(sTmp)}, {s(sBlk)}, 3", f"s_add_u32 {s(sCtrP)}, {s(sTmp)}, {s(sB)}", f"s_lshl_b32 {s(sCtrP)}, {s(sCtrP)}, 4",
          f"s_add_u32 {s(sCtrC)}, {s(sTmp)}, {s(sPB)}", f"s_lshl_b32 {s(sTmp)}, {s(sCtrC)}, 20", f"s_lshl_b32 {s(sCtrC)}, {s(sCtrC)}, 4")
        self.srd(SOR, pWs, s(sTmp), 0x100000)
        e(f"s_lshl_b32 {s(sTmp)}, {s(sNT)}, 7")
        self.srd(SWO, pWo, s(sTmp), f"s_sub_u32 {s(SWO+2)}, 0x800000, {s(sTmp)}")
        e(f"s_lshl_b32 {s(sTmp2)}, {s(sPB)}, 19", f"s_add_u32 {s(sTmp)}, {s(sTmp)}, {s(sTmp2)}", f"s_lshl_b32 {s(sTmp2)}, {s(sBlk)}, 11", f"s_add_u32 {s(sTmp)}, {s(sTmp)}, {s(sTmp2)}")
        self.srd(SOUT, pOut, s(sTmp), f"s_sub_u32 {s(SOUT+2)}, 0x400000, {s(sTmp)}")
        self.srd(SDBG, pDbg, None, 256)
        if c.diag:
            e(f"s_lshl_b32 {s(sTmp)}, s2, 8", f"s_add_u32 {s(sTmp)}, {s(sTmp)}, 0x2000000"); self.srd(SST, pWs, s(sTmp), 256)
            e(f"s_mov_b32 {s(sStI)}, 0")
        e(f"s_lshl_b32 {s(sQh)}, {s(sH0)}, 8", f"s_mov_b32 {s(sOOB)}, 0x40000000",
          f"s_mov_b32 {s(sKV)}, 0", f"s_mov_b32 {s(sVp)}, {s(sOOB)}", f"s_mov_b32 {s(sOst)}, 0",
          f"s_mov_b32 {s(sScale)}, {hex(f2u(math.log2(math.e) / math.sqrt(128.0)))}")
        self.q_ld_init()
        self.stamp()
        e(f"s_mov_b32 {s(sPrev)}, 0", f"s_mov_b32 {s(sCo)}, 0x8000")
        for i in range(4):
            self.ld_block("Q"); e(self.slot_adv())
        e(f"s_mov_b32 {s(sCo)}, 0")
        hi, rr, cc, g1 = v(6), v(7), v(8), v(9)
        e(f"v_lshrrev_b32 {hi}, 5, {l}", f"v_bfe_u32 {rr}, {l}, 2, 2", f"v_and_b32 {cc}, 3, {l}", f"v_and_b32 {g1}, 1, {t0}")
        e(f"v_bfe_u32 {t2}, {l}, 3, 2", f"v_and_b32 {t3}, 7, {l}", f"v_lshl_add_u32 {t3}, {t2}, 4, {t3}",
          f"v_lshl_add_u32 {t4}, {t2}, 2, {cc}", f"v_xor_b32 {t4}, {t4}, {hi}", f"v_lshlrev_b32 {t4}, 4, {t4}",
          f"v_lshl_add_u32 {v(vKb)}, {t3}, 8, {t4}")
        e(f"v_lshl_add_u32 {t2}, {hi}, 2, {rr}", f"v_lshlrev_b32 {t3}, 6, {rr}", f"v_lshl_add_u32 {t3}, {g1}, 5, {t3}",
          f"v_lshl_add_u32 {t4}, {t2}, 8, {t3}", f"v_lshl_add_u32 {v(vVb)}, {cc}, 3, {t4}")
        pc = v(10)
        e(f"v_and_b32 {pc}, 1, {cc}", f"v_lshlrev_b32 {pc}, 4, {pc}", f"v_lshrrev_b32 {t4}, 1, {cc}", f"v_lshl_add_u32 {pc}, {t4}, 3, {pc}")
        e(f"v_lshl_add_u32 {t4}, {hi}, 3, {rr}", f"v_lshl_add_u32 {t4}, {t4}, 8, {t3}", f"v_add_u32 {v(vWb)}, {t4}, {pc}")
        e(f"v_lshrrev_b32 {t3}, 1, {rr}", f"v_lshlrev_b32 {t3}, 6, {t3}", f"v_lshl_add_u32 {t3}, {g1}, 5, {t3}", f"v_lshl_add_u32 {t3}, {t2}, 7, {t3}", f"v_add_u32 {v(vOb)}, {t3}, {pc}")
        e(f"v_and_b32 {t2}, 31, {l}", f"v_bfe_u32 {t3}, {l}, 1, 3", f"v_xor_b32 {t3}, {t3}, {hi}", f"v_lshlrev_b32 {t3}, 4, {t3}",
          f"v_lshl_add_u32 {t3}, {t2}, 7, {t3}", f"v_add_u32 {v(vXb)}, {s(sW4k)}, {t3}")
        e(f"s_lshl_b32 {s(sTmp)}, {W}, 13", f"v_lshlrev_b32 {t3}, 4, {l}", f"v_add_u32 {v(vOL)}, {s(sTmp)}, {t3}", f"v_add_u32 {v(vOL+1)}, 0x1000, {v(vOL)}",
          f"s_lshl_b32 {s(sTmp)}, {W}, 17", f"v_lshlrev_b32 {t3}, 4, {hi}", f"v_lshl_add_u32 {t3}, {t2}, 12, {t3}", f"v_add_u32 {v(vOut)}, {s(sTmp)}, {t3}")
        for i in range(32): e(f"v_mov_b32 {v(vVF+i)}, 0")
        for i in range(32): e(f"v_accvgpr_write_b32 {a(aP+i)}, 0")
    def q_ld_init(self):
        self.e(f"s_mov_b32 {s(sKt)}, {s(sKt0)}", f"s_lshl_b32 {s(sQx)}, {s(sKt)}, 7", f"s_lshl_b32 {s(sQw)}, {s(sKt)}, 19", f"s_add_u32 {s(sQw)}, {s(sQw)}, {s(sQh)}")
    def p_init(self, ph, n):
        self.e(f"s_mov_b32 {s(sPph)}, {hex(ph*0x40000)}", f"s_mov_b32 {s(sPt)}, {s(sRot)}", f"s_mov_b32 {s(sPleft)}, {n}",
               f"s_mov_b32 {s(sOt)}, {s(sRot)}", f"s_mov_b32 {s(sOleft)}, {n}", self.p_ld_calc())

    def main(self):
        e = self.e; c = self.c
        self.call("LQI"); self.call("LQQ", 12); self.call("LQA", 4); self.call("LQF"); self.stamp()
        self.call("LHI")
        self.call("LAA", [f"s_sub_u32 {s(sCnt)}, {s(sN1)}, 4"])
        e(f"s_add_u32 {s(sQh)}, {s(sQh)}, 256"); self.q_ld_init()
        self.call("LAQ", 4); self.stamp()
        self.call("LQI"); self.call("LQQ", 12); self.call("LQA", 4); self.call("LQF"); self.stamp()
        self.call("LAA", [f"s_sub_u32 {s(sCnt)}, 16, {s(sN1)}"])
        self.call("LE"); self.stamp(); self.call("LHI")
        self.call("LAA", 2); self.signal(16)
        if c.split_p:
            self.call("LAA", [f"s_sub_u32 {s(sCnt)}, {s(sN2)}, 6"])
            self.p_init(0, 8)
            self.call("LAP", 4); self.stamp()
            self.poll(); self.stamp()
            self.call("LPI"); self.call("LPP", 4); self.call("LPA", 4); self.stamp()
            self.call("LAA", [f"s_sub_u32 {s(sCnt)}, 13, {s(sN2)}"])
            self.p_init(1, 8)
        else:
            self.call("LAA", 11)
            self.p_init(0, 16)
        self.call("LAP", 3); self.stamp()
        self.call("LE")
        self.ld_block("P"); e(self.slot_adv())
        self.signal(8); self.stamp()
        self.poll(1 if c.split_p else 2); self.stamp()
        self.call("LPI"); self.call("LPP", 8 if c.split_p else 16); self.stamp()
        e("s_nop 7", "s_nop 3")
        for i in range(32): e(f"v_accvgpr_read_b32 {v(vO+i)}, {a(aP+i)}")
        for j in range(16): e(f"v_cvt_pk_bf16_f32 {v(vKF+j)}, {v(vO+2*j)}, {v(vO+2*j+1)}")
        for k in range(4): e(f"buffer_store_dwordx4 {v(vKF+4*k,4)}, {v(vOut)}, {s(SOUT,4)}, 0 offen offset:{32*k} {c.out_pol}".rstrip())
        if c.diag:
            e("s_waitcnt vmcnt(0)"); self.stamp()
        e("Lend:", "s_endpgm")

    def build(self):
        c = self.c
        self.prologue(); self.main()
        for lt in "QA": self.q_body(lt)
        self.q_init(); self.q_fin(); self.head_init()
        for lt in "AQP": self.a_body(lt)
        self.e_block()
        self.rare(vSA, "LrareA"); self.rare(vSB, "LrareB")
        self.p_pro()
        for lt in "PA": self.p_body(lt)
        self.e(self.tail)
        self.e("s_endpgm")
        hdr = [f"; fused Q-projection + attention + output projection, one persistent workgroup per CU (generated by gen.py)",
               f"; @launch grid=(256,1,1) block=(256,1,1) lds=163840",
               '.amdgcn_target "amdgcn-amd-amdhsa--gfx950"', ".text", f".globl {NAME}_kernel", ".p2align 8",
               f".type {NAME}_kernel,@function", f"{NAME}_kernel:"]
        ftr = ['.section .rodata,"a"', ".p2align 6", f".amdhsa_kernel {NAME}_kernel",
               f"  .amdhsa_next_free_vgpr {256+NA}", "  .amdhsa_next_free_sgpr 102", "  .amdhsa_accum_offset 256",
               "  .amdhsa_group_segment_fixed_size 0", "  .amdhsa_kernarg_size 104", "  .amdhsa_user_sgpr_count 2",
               "  .amdhsa_user_sgpr_kernarg_segment_ptr 1", "  .amdhsa_system_sgpr_workgroup_id_x 1",
               "  .amdhsa_float_denorm_mode_32 3", ".end_amdhsa_kernel"]
        body = [x if x.endswith(":") else "    " + x for x in self.L]
        return "\n".join(hdr + body + ftr) + "\n"

def make(**kw):
    c = Cfg()
    for k, x in kw.items():
        assert hasattr(c, k), k
        setattr(c, k, x)
    return G(c).build()

if __name__ == "__main__":
    out = sys.argv[1]
    kw = {}
    for x in sys.argv[2:]:
        k, val = x.split("=", 1)
        kw[k] = eval(val)
    open(out, "w").write(make(**kw))
```
